```python
import torch

def _softmax(x, axis=-1):
    return torch.softmax(x, dim=axis)
def _gelu(x):
    return torch.nn.functional.gelu(x, approximate="tanh")
def _silu(x):
    return torch.nn.functional.silu(x)
def _sigmoid(x):
    return torch.sigmoid(x)
def _layernorm(x, axis=-1, eps=1e-5):
    m = x.mean(dim=axis, keepdim=True)
    v = x.var(dim=axis, keepdim=True, unbiased=False)
    return (x - m) / torch.sqrt(v + eps)
def _scatter_add(tgt, idx, src, axis=0):
    return tgt.clone().index_add_(axis, idx, src)
def _segment_sum(src, seg, n):
    out = torch.zeros((n,) + src.shape[1:], dtype=src.dtype)
    return out.index_add_(0, seg, src)
def _pad(x, pw):
    flat = tuple(v for pair in reversed(pw) for v in pair)
    return torch.nn.functional.pad(x, flat)

kernel_name = 'recurrent_scan__ssm_conv_s5__glu_gated_bilinear__prompt'

def setup_inputs():

    _w = (lambda a: (lambda t: t.to(torch.bfloat16) if t.is_floating_point() else t)(torch.as_tensor(a)))
    def _A_setup():
        B, S, D = 1, 2048, 512
        P = D
        Lambda_re = -0.5 * (lambda _x: torch.exp(torch.as_tensor(_x)))((lambda *s: torch.randn(*s, dtype=torch.bfloat16) * 0.8)(P))
        Lambda_im = (lambda *s: torch.randn(*s, dtype=torch.bfloat16) * 0.8)(P) * 1.0
        B_re = (lambda *s: torch.randn(*s, dtype=torch.bfloat16) * 1.6)(P, D) * (D ** -0.5)
        B_im = (lambda *s: torch.randn(*s, dtype=torch.bfloat16) * 0.8)(P, D) * (D ** -0.5)
        C_re = (lambda *s: torch.randn(*s, dtype=torch.bfloat16) * 1.6)(D, P) * (P ** -0.5)
        C_im = (lambda *s: torch.randn(*s, dtype=torch.bfloat16) * 0.8)(D, P) * (P ** -0.5)
        log_dt = (lambda *s: torch.randn(*s, dtype=torch.bfloat16) * 0.8)(P) * 0.3 - 2.0
        Dskip = (lambda *s: torch.randn(*s, dtype=torch.bfloat16) * 0.8)(D)
        return {
            "x": _w((lambda *s: torch.randn(*s, dtype=torch.bfloat16) * 0.05)(B, S, D)),
            "Lambda_re": _w(Lambda_re),
            "Lambda_im": _w(Lambda_im),
            "B_re": _w(B_re),
            "B_im": _w(B_im),
            "C_re": _w(C_re),
            "C_im": _w(C_im),
            "log_dt": _w(log_dt),
            "Dskip": _w(Dskip),
        }
    _A_in = _A_setup()

    def _B_setup():
        B, S, D, F = 1, 2048, 512, 1792
        return {
            "x": _w((lambda *s: torch.randn(*s, dtype=torch.bfloat16) * 0.05)(B, S, D)),
            "w_gate": _w((lambda *s: torch.randn(*s, dtype=torch.bfloat16) * 0.2)(D, F) * (D ** -0.5)),
            "w_up": _w((lambda *s: torch.randn(*s, dtype=torch.bfloat16) * 0.2)(D, F) * (D ** -0.5)),
            "w_down": _w((lambda *s: torch.randn(*s, dtype=torch.bfloat16) * 0.2)(F, D) * (F ** -0.5)),
        }
    _B_in = _B_setup()

    return {
        "A_x": _A_in["x"],
        "A_Lambda_re": _A_in["Lambda_re"],
        "A_Lambda_im": _A_in["Lambda_im"],
        "A_B_re": _A_in["B_re"],
        "A_B_im": _A_in["B_im"],
        "A_C_re": _A_in["C_re"],
        "A_C_im": _A_in["C_im"],
        "A_log_dt": _A_in["log_dt"],
        "A_Dskip": _A_in["Dskip"],
        "B_x": _B_in["x"],
        "B_w_gate": _B_in["w_gate"],
        "B_w_up": _B_in["w_up"],
        "B_w_down": _B_in["w_down"],
    }

def reference(A_x, A_Lambda_re, A_Lambda_im, A_B_re, A_B_im, A_C_re, A_C_im, A_log_dt, A_Dskip, B_x, B_w_gate, B_w_up, B_w_down):
    def _A_ref(x, Lambda_re, Lambda_im, B_re, B_im, C_re, C_im, log_dt, Dskip):
        Bsz, L, H = x.shape
        Lam = Lambda_re + 1j * Lambda_im
        Bmat = B_re + 1j * B_im
        Cmat = C_re + 1j * C_im
        dt = torch.exp(log_dt)
        Lam_bar = torch.exp(dt * Lam)
        B_bar = ((Lam_bar - 1.0) / Lam)[:, None] * Bmat
        Bu = torch.einsum("bld,pd->blp", x + 0j, B_bar)
        h = torch.zeros_like(Bu[:, 0, :])
        hs = []
        for t in range(L):
            h = Lam_bar[None, :] * h + Bu[:, t, :]
            hs.append(h)
        hseq = torch.stack(hs, 1)
        y = 2.0 * torch.einsum("blp,dp->bld", hseq, Cmat).real + x * Dskip[None, None, :]
        return y

    def _B_ref(x, w_gate, w_up, w_down):
        g = torch.einsum("bsd,df->bsf", x, w_gate)
        u = torch.einsum("bsd,df->bsf", x, w_up)
        h = g * u
        return torch.einsum("bsf,fd->bsd", h, w_down)

    x = A_x
    xn = _layernorm(x, axis=-1)
    s = _A_ref(xn, A_Lambda_re, A_Lambda_im, A_B_re, A_B_im, A_C_re, A_C_im, A_log_dt, A_Dskip)
    g = _silu(_B_ref(xn, B_w_gate, B_w_up, B_w_down))
    return x + s * g
```

```python
class Asm:
    def __init__(self):
        self.L = []
    def __call__(self, s=""):
        for line in s.strip("\n").split("\n"):
            self.L.append("    " + line.strip() if line.strip() and not line.strip().endswith(":") else line.strip())
    def raw(self, s):
        self.L.append(s)
    def text(self):
        return "\n".join(self.L) + "\n"

KA = dict(x=0, Lre=8, Lim=16, Bre=24, Bim=32, Cre=40, Cim=48, ldt=56, Dskip=64, Bx=72, Wg=80, Wu=88, Wd=96, out=104, dbg=112, ws=120)

WS = dict(XN=0x0, WT1=0x200000, WDT=0x600000, BU=0x800000, E=0x1000000, HS=0x1100000, HG=0x1600000)
SZ = dict(XN=2048*512*2, WT1=3584*512*2, WDT=512*1792*2, BU=2048*1024*4, E=64*1024*4, HS=2048*1024*2, HG=2048*1792*2)

def srd_from_ptr(a, d, p, size, add=0):
    if add:
        a(f"s_add_u32 s{d}, s{p}, 0x{add:x}")
        a(f"s_addc_u32 s{d+1}, s{p+1}, 0")
        a(f"s_and_b32 s{d+1}, s{d+1}, 0xffff")
    else:
        a(f"s_mov_b32 s{d}, s{p}")
        a(f"s_and_b32 s{d+1}, s{p+1}, 0xffff")
    a(f"s_mov_b32 s{d+2}, 0x{size:x}")
    a(f"s_mov_b32 s{d+3}, 0x20000")

def rne_bf16(a, dst, src):
    a(f"v_cvt_pk_bf16_f32 v{dst}, v{src}, v{src}")
    a(f"v_lshlrev_b32 v{dst}, 16, v{dst}")

LOG2E = "0x3fb8aa3b"
INV2PI = "0x3e22f983"

def lam_coef(a, vLre, vLim, vldt, vlr, vli, vcr, vci, t):
    t0,t1,t2,t3,t4,t5 = [t+i for i in range(6)]
    a(f"v_mul_f32 v{t0}, {LOG2E}, v{vldt}")
    a(f"v_exp_f32 v{t0}, v{t0}")
    a("s_nop 0")
    rne_bf16(a, t0, t0)
    a(f"v_mul_f32 v{t1}, v{t0}, v{vLre}")
    a(f"v_mul_f32 v{t2}, v{t0}, v{vLim}")
    a(f"v_mul_f32 v{t1}, {LOG2E}, v{t1}")
    a(f"v_exp_f32 v{t1}, v{t1}")
    a(f"v_mul_f32 v{t2}, {INV2PI}, v{t2}")
    a(f"v_cos_f32 v{t3}, v{t2}")
    a(f"v_sin_f32 v{t4}, v{t2}")
    a("s_nop 0")
    a(f"v_mul_f32 v{vlr}, v{t1}, v{t3}")
    a(f"v_mul_f32 v{vli}, v{t1}, v{t4}")
    a(f"v_mul_f32 v{t0}, v{vLre}, v{vLre}")
    a(f"v_fma_f32 v{t0}, v{vLim}, v{vLim}, v{t0}")
    a(f"v_rcp_f32 v{t0}, v{t0}")
    a(f"v_add_f32 v{t1}, -1.0, v{vlr}")
    a(f"v_mul_f32 v{t2}, v{t1}, v{vLre}")
    a(f"v_fma_f32 v{t2}, v{vli}, v{vLim}, v{t2}")
    a(f"v_mul_f32 v{t3}, v{vli}, v{vLre}")
    a(f"v_fma_f32 v{t3}, -v{t1}, v{vLim}, v{t3}")
    a(f"v_mul_f32 v{vcr}, v{t2}, v{t0}")
    a(f"v_mul_f32 v{vci}, v{t3}, v{t0}")

def cmul(a, dr, di, ar, ai, br, bi, t):
    a(f"v_mul_f32 v{t}, v{ai}, v{bi}")
    a(f"v_fma_f32 v{t}, v{ar}, v{br}, -v{t}")
    a(f"v_mul_f32 v{di}, v{ai}, v{br}") if di not in (ar,ai,br,bi) else None
    if di in (ar,ai,br,bi):
        raise Exception("alias")
    a(f"v_fma_f32 v{di}, v{ar}, v{bi}, v{di}")
    a(f"v_mov_b32 v{dr}, v{t}")

def kernel_desc(name, vgpr, sgpr, accum):
    return f"""
.amdhsa_kernel {name}
  .amdhsa_next_free_vgpr {vgpr}
  .amdhsa_next_free_sgpr {sgpr}
  .amdhsa_accum_offset {accum}
  .amdhsa_group_segment_fixed_size 0
  .amdhsa_kernarg_size 128
  .amdhsa_user_sgpr_count 2
  .amdhsa_user_sgpr_kernarg_segment_ptr 1
  .amdhsa_system_sgpr_workgroup_id_x 1
.end_amdhsa_kernel
"""
```

```python
from common import *

NT_WG = 672
K0_GRID = 256 + NT_WG

def gen_k0(a):
    a.raw(".p2align 8")
    a.raw(".type k0_kernel,@function")
    a.raw("k0_kernel:")
    a(f"""
    s_cmp_ge_u32 s2, {K0_GRID}
    s_cbranch_scc1 K0_EXIT
    s_cmp_ge_u32 s2, 256
    s_cbranch_scc1 K0_TRANS
    s_load_dwordx2 s[4:5], s[0:1], {KA['x']}
    s_load_dwordx2 s[6:7], s[0:1], {KA['Lre']}
    s_load_dwordx2 s[8:9], s[0:1], {KA['Lim']}
    s_load_dwordx2 s[10:11], s[0:1], {KA['Bre']}
    s_load_dwordx2 s[12:13], s[0:1], {KA['Bim']}
    s_load_dwordx2 s[14:15], s[0:1], {KA['ldt']}
    s_load_dwordx2 s[16:17], s[0:1], {KA['ws']}
    v_and_b32 v1, 63, v0
    v_lshrrev_b32 v2, 6, v0
    s_lshr_b32 s56, s2, 2
    s_and_b32 s57, s2, 3
    s_nop 0
    v_readfirstlane_b32 s58, v2
    s_waitcnt lgkmcnt(0)
    """)
    srd_from_ptr(a, 20, 4, 2048*512*2)
    srd_from_ptr(a, 24, 16, SZ['XN'], WS['XN'])
    srd_from_ptr(a, 28, 10, 512*512*2)
    srd_from_ptr(a, 32, 12, 512*512*2)
    srd_from_ptr(a, 36, 16, SZ['BU'], WS['BU'])
    srd_from_ptr(a, 40, 16, SZ['E'], WS['E'])
    srd_from_ptr(a, 44, 6, 1024)
    srd_from_ptr(a, 48, 8, 1024)
    srd_from_ptr(a, 52, 14, 1024)
    a(f"""
    s_lshl_b32 s59, s56, 5
    s_lshl_b32 s60, s58, 3
    s_add_u32 s59, s59, s60
    s_lshl_b32 s59, s59, 10
    s_add_u32 s60, s59, 4096
    v_lshlrev_b32 v3, 4, v1
    """)
    for i in range(8):
        so = "s59" if i < 4 else "s60"
        a(f"buffer_load_dwordx4 v[{16+4*i}:{19+4*i}], v3, s[20:23], {so} offen offset:{(i%4)*1024}")
    for i in range(8):
        a(f"s_waitcnt vmcnt({7-i})")
        for d in range(4):
            src = 16+4*i+d
            f = 48+8*i+2*d
            a(f"v_lshlrev_b32 v{f}, 16, v{src}")
            a(f"v_and_b32 v{f+1}, 0xffff0000, v{src}")
        s1, s2_ = 112+i, 120+i
        f = 48+8*i
        a(f"v_add_f32 v{s1}, v{f}, v{f+1}")
        a(f"v_mul_f32 v{s2_}, v{f}, v{f}")
        a(f"v_fma_f32 v{s2_}, v{f+1}, v{f+1}, v{s2_}")
        for j in range(2, 8):
            a(f"v_add_f32 v{s1}, v{s1}, v{f+j}")
            a(f"v_fma_f32 v{s2_}, v{f+j}, v{f+j}, v{s2_}")
    vals = list(range(112, 128))
    for ctrl in ["quad_perm:[1,0,3,2]", "quad_perm:[2,3,0,1]", "row_ror:4", "row_ror:8"]:
        for v in vals:
            a(f"v_add_f32_dpp v{v}, v{v}, v{v} {ctrl} row_mask:0xf bank_mask:0xf")
    for sw in ["v_permlane16_swap_b32", "v_permlane32_swap_b32"]:
        for v in vals:
            t = 128 + (v - 112)
            a(f"v_mov_b32 v{t}, v{v}")
        a("s_nop 1")
        for v in vals:
            t = 128 + (v - 112)
            a(f"{sw} v{v}, v{t}")
        for v in vals:
            t = 128 + (v - 112)
            a(f"v_add_f32 v{v}, v{v}, v{t}")
    a("v_mov_b32 v144, 0x3b000000")
    for i in range(8):
        s1, s2_ = 112+i, 120+i
        a(f"v_mul_f32 v{s1}, v{s1}, v144")
        a(f"v_mul_f32 v{s2_}, v{s2_}, v144")
        a(f"v_fma_f32 v{s2_}, -v{s1}, v{s1}, v{s2_}")
        a(f"v_max_f32 v{s2_}, 0, v{s2_}")
        rne_bf16(a, s1, s1)
        rne_bf16(a, s2_, s2_)
        a(f"v_add_f32 v{s2_}, 0x3727c5ac, v{s2_}")
        rne_bf16(a, s2_, s2_)
        a(f"v_sqrt_f32 v{s2_}, v{s2_}")
        a("s_nop 0")
        rne_bf16(a, s2_, s2_)
        a(f"v_rcp_f32 v{s2_}, v{s2_}")
    a("s_nop 0")
    a(f"""
    s_mul_i32 s61, s58, {8*1040}
    v_lshlrev_b32 v4, 4, v1
    v_add_u32 v4, s61, v4
    """)
    for i in range(8):
        m, ri = 112+i, 120+i
        for d in range(4):
            f = 48+8*i+2*d
            dst = 16+4*i+d
            a(f"v_sub_f32 v{f}, v{f}, v{m}")
            a(f"v_sub_f32 v{f+1}, v{f+1}, v{m}")
            a(f"v_cvt_pk_bf16_f32 v{dst}, v{f}, v{f+1}")
            a(f"v_lshlrev_b32 v{f}, 16, v{dst}")
            a(f"v_and_b32 v{f+1}, 0xffff0000, v{dst}")
            a(f"v_mul_f32 v{f}, v{f}, v{ri}")
            a(f"v_mul_f32 v{f+1}, v{f+1}, v{ri}")
            a(f"v_cvt_pk_bf16_f32 v{dst}, v{f}, v{f+1}")
        a(f"ds_write_b128 v4, v[{16+4*i}:{19+4*i}] offset:{i*1040}")
    a("""
    s_cmp_eq_u32 s57, 0
    s_cbranch_scc0 K0_NOXN
    """)
    for i in range(8):
        so = "s59" if i < 4 else "s60"
        a(f"buffer_store_dwordx4 v[{16+4*i}:{19+4*i}], v3, s[24:27], {so} offen offset:{(i%4)*1024}")
    a("K0_NOXN:")
    a("s_waitcnt vmcnt(0) lgkmcnt(0)")
    a("s_barrier")
    a(f"""
    v_and_b32 v7, 15, v1
    v_lshrrev_b32 v8, 4, v1
    s_lshl_b32 s61, s57, 7
    s_lshl_b32 s62, s58, 5
    s_add_u32 s61, s61, s62
    v_add_u32 v5, s61, v7
    v_lshlrev_b32 v5, 10, v5
    v_lshlrev_b32 v9, 5, v8
    v_add_u32 v5, v5, v9
    v_mul_u32_u24 v6, 1040, v7
    v_add_u32 v6, v6, v9
    s_movk_i32 s62, 0x4000
    """)
    ACC = 16
    for r in range(32):
        a(f"v_mov_b32 v{ACC+r}, 0")
    AF = 48
    BF = 64
    def bloads(u):
        st = BF + 32*(u % 3)
        for n in range(4):
            srd = "s[28:31]" if n < 2 else "s[32:35]"
            so = "0" if n % 2 == 0 else "s62"
            for h in range(2):
                r0 = st + 8*n + 4*h
                a(f"buffer_load_dwordx4 v[{r0}:{r0+3}], v5, {srd}, {so} offen offset:{u*128+h*16}")
    bloads(0); bloads(1)
    for u in range(8):
        if u + 2 < 8:
            bloads(u+2)
        for m in range(2):
            for h in range(2):
                r0 = AF + 8*m + 4*h
                a(f"ds_read_b128 v[{r0}:{r0+3}], v6 offset:{m*16*1040 + u*128 + h*16}")
        rem = min(7-u, 2)*8
        a(f"s_waitcnt vmcnt({rem}) lgkmcnt(0)")
        st = BF + 32*(u % 3)
        for h in range(2):
            for m in range(2):
                for n in range(4):
                    c = ACC + 4*(4*m+n)
                    ar = AF + 8*m + 4*h
                    br = st + 8*n + 4*h
                    a(f"v_mfma_f32_16x16x32_bf16 v[{c}:{c+3}], v[{ar}:{ar+3}], v[{br}:{br+3}], v[{c}:{c+3}]")
    a("s_nop 7")
    a("s_nop 7")
    a(f"""
    v_add_u32 v64, s61, v7
    v_lshlrev_b32 v64, 1, v64
    buffer_load_ushort v66, v64, s[44:47], 0 offen
    buffer_load_ushort v67, v64, s[48:51], 0 offen
    buffer_load_ushort v68, v64, s[52:55], 0 offen
    buffer_load_ushort v69, v64, s[44:47], 0 offen offset:32
    buffer_load_ushort v70, v64, s[48:51], 0 offen offset:32
    buffer_load_ushort v71, v64, s[52:55], 0 offen offset:32
    s_waitcnt vmcnt(0)
    """)
    for r in range(66, 72):
        a(f"v_lshlrev_b32 v{r}, 16, v{r}")
    for j in range(2):
        lam_coef(a, 66+3*j, 67+3*j, 68+3*j, 72+4*j, 73+4*j, 74+4*j, 75+4*j, 80)
    a(f"""
    s_lshl_b32 s63, s56, 17
    v_lshlrev_b32 v90, 14, v8
    v_add_u32 v90, s63, v90
    v_add_u32 v91, s61, v7
    v_lshlrev_b32 v91, 2, v91
    v_add_u32 v90, v90, v91
    """)
    for j in range(2):
        lr, li, cr, ci = 72+4*j, 73+4*j, 74+4*j, 75+4*j
        er, ei = 100+2*j, 101+2*j
        cmul(a, 92, 93, lr, li, lr, li, 89)
        cmul(a, 94, 95, 92, 93, 92, 93, 89)
        cmul(a, 96, 97, 94, 95, 94, 95, 89)
        cmul(a, 98, 99, 96, 97, 94, 95, 89)
        cmul(a, 86, 87, 98, 99, lr, li, 89)
        first = True
        for m in range(2):
            for r in range(4):
                R = ACC + 4*(4*m + j) + r
                I = ACC + 4*(4*m + 2 + j) + r
                a(f"v_mul_f32 v104, v{ci}, v{I}")
                a(f"v_fma_f32 v104, v{cr}, v{R}, -v104")
                a(f"v_mul_f32 v105, v{ci}, v{R}")
                a(f"v_fma_f32 v105, v{cr}, v{I}, v105")
                off = m*65536 + r*4096 + j*64
                a(f"v_add_u32 v106, 0x{off:x}, v90")
                a(f"buffer_store_dword v104, v106, s[36:39], 0 offen")
                a(f"buffer_store_dword v105, v106, s[36:39], 0 offen offset:2048")
                if first:
                    a(f"v_mov_b32 v{er}, v104")
                    a(f"v_mov_b32 v{ei}, v105")
                    first = False
                else:
                    pr, pi = (86, 87) if (m == 1 and r == 0) else (lr, li)
                    a(f"v_mul_f32 v107, v{ei}, v{pi}")
                    a(f"v_fma_f32 v107, v{er}, v{pr}, -v107")
                    a(f"v_mul_f32 v108, v{ei}, v{pr}")
                    a(f"v_fma_f32 v108, v{er}, v{pi}, v108")
                    a(f"v_add_f32 v{er}, v107, v104")
                    a(f"v_add_f32 v{ei}, v108, v105")
        a(f"""
        v_mov_b32 v107, 1.0
        v_mov_b32 v108, 0
        v_cmp_eq_u32 vcc, 2, v8
        s_nop 1
        v_cndmask_b32 v107, v107, v94, vcc
        v_cndmask_b32 v108, v108, v95, vcc
        v_cmp_eq_u32 vcc, 1, v8
        s_nop 1
        v_cndmask_b32 v107, v107, v96, vcc
        v_cndmask_b32 v108, v108, v97, vcc
        v_cmp_eq_u32 vcc, 0, v8
        s_nop 1
        v_cndmask_b32 v107, v107, v98, vcc
        v_cndmask_b32 v108, v108, v99, vcc
        """)
        cmul(a, 109, 110, er, ei, 107, 108, 89)
        a(f"v_mov_b32 v{er}, v109")
        a(f"v_mov_b32 v{ei}, v110")
    for sw in ["v_permlane16_swap_b32", "v_permlane32_swap_b32"]:
        for v in range(100, 104):
            a(f"v_mov_b32 v{v+12}, v{v}")
        a("s_nop 1")
        for v in range(100, 104):
            a(f"{sw} v{v}, v{v+12}")
        for v in range(100, 104):
            a(f"v_add_f32 v{v}, v{v}, v{v+12}")
    a(f"""
    s_lshl_b32 s63, s56, 12
    v_add_u32 v91, s61, v7
    v_lshlrev_b32 v91, 2, v91
    v_add_u32 v91, s63, v91
    v_cmp_gt_u32 vcc, 16, v1
    s_and_saveexec_b64 s[64:65], vcc
    buffer_store_dword v100, v91, s[40:43], 0 offen
    buffer_store_dword v101, v91, s[40:43], 0 offen offset:2048
    buffer_store_dword v102, v91, s[40:43], 0 offen offset:64
    buffer_store_dword v103, v91, s[40:43], 0 offen offset:2112
    s_mov_b64 exec, s[64:65]
    s_endpgm
    """)
    a("K0_TRANS:")
    a(f"""
    s_load_dwordx2 s[4:5], s[0:1], {KA['Wg']}
    s_load_dwordx2 s[6:7], s[0:1], {KA['Wu']}
    s_load_dwordx2 s[8:9], s[0:1], {KA['Wd']}
    s_load_dwordx2 s[16:17], s[0:1], {KA['ws']}
    s_sub_u32 s56, s2, 256
    v_lshrrev_b32 v1, 3, v0
    v_and_b32 v2, 7, v0
    v_mul_u32_u24 v3, {8*144}, v2
    v_lshl_add_u32 v3, v1, 1, v3
    v_mul_u32_u24 v4, 144, v1
    v_lshl_add_u32 v4, v2, 4, v4
    s_waitcnt lgkmcnt(0)
    s_cmp_ge_u32 s56, 448
    s_cbranch_scc1 K0_T_DOWN
    """)
    srd_from_ptr(a, 24, 16, SZ['WT1'], WS['WT1'])
    a("""
    s_cmp_ge_u32 s56, 224
    s_cbranch_scc1 K0_T_UP
    """)
    srd_from_ptr(a, 20, 4, 512*1792*2)
    a("""
    s_mov_b32 s57, 0
    s_branch K0_T_GU
    K0_T_UP:
    """)
    srd_from_ptr(a, 20, 6, 512*1792*2)
    a(f"""
    s_sub_u32 s56, s56, 224
    s_mov_b32 s57, 64
    K0_T_GU:
    s_and_b32 s58, s56, 7
    s_lshr_b32 s59, s56, 3
    s_mul_i32 s60, s58, {64*3584}
    s_lshl_b32 s61, s59, 7
    s_add_u32 s60, s60, s61
    v_mul_u32_u24 v5, 3584, v1
    v_lshl_add_u32 v5, v2, 4, v5
    s_mov_b32 s62, {32*3584}
    s_lshl_b32 s61, s59, 7
    s_add_u32 s61, s61, s57
    s_lshl_b32 s61, s61, 10
    s_lshl_b32 s63, s58, 7
    s_add_u32 s61, s61, s63
    v_lshlrev_b32 v6, 10, v1
    v_lshl_add_u32 v6, v2, 4, v6
    s_mov_b32 s63, {32*1024}
    s_branch K0_T_BODY
    K0_T_DOWN:
    """)
    srd_from_ptr(a, 24, 16, SZ['WDT'], WS['WDT'])
    srd_from_ptr(a, 20, 8, 1792*512*2)
    a(f"""
    s_sub_u32 s56, s56, 448
    s_and_b32 s59, s56, 7
    s_lshr_b32 s58, s56, 3
    s_lshl_b32 s60, s58, 16
    s_lshl_b32 s61, s59, 7
    s_add_u32 s60, s60, s61
    v_lshlrev_b32 v5, 10, v1
    v_lshl_add_u32 v5, v2, 4, v5
    s_mov_b32 s62, {32*1024}
    s_mul_i32 s61, s59, {64*3584}
    s_lshl_b32 s63, s58, 7
    s_add_u32 s61, s61, s63
    v_mul_u32_u24 v6, 3584, v1
    v_lshl_add_u32 v6, v2, 4, v6
    s_mov_b32 s63, {32*3584}
    K0_T_BODY:
    buffer_load_dwordx4 v[8:11], v5, s[20:23], s60 offen
    s_add_u32 s60, s60, s62
    buffer_load_dwordx4 v[12:15], v5, s[20:23], s60 offen
    """)
    for half in range(2):
        a(f"s_waitcnt vmcnt({1-half})")
        for d in range(4):
            r = 8 + 4*half + d
            a(f"ds_write_b16 v3, v{r} offset:{(2*d)*144 + half*64}")
            a(f"ds_write_b16_d16_hi v3, v{r} offset:{(2*d+1)*144 + half*64}")
    a("""
    s_waitcnt lgkmcnt(0)
    s_barrier
    ds_read_b128 v[8:11], v4
    ds_read_b128 v[12:15], v4 offset:4608
    s_waitcnt lgkmcnt(1)
    buffer_store_dwordx4 v[8:11], v6, s[24:27], s61 offen
    s_add_u32 s61, s61, s63
    s_waitcnt lgkmcnt(0)
    buffer_store_dwordx4 v[12:15], v6, s[24:27], s61 offen
    K0_EXIT:
    s_endpgm
    """)
    return kernel_desc("k0_kernel", 160, 70, 160)
```

```python
from common import *

K1_GRID = 256
NSCAN = 32

def gen_scan(a):
    a(f"""
    K1_SCAN:
    s_load_dwordx2 s[6:7], s[0:1], {KA['Lre']}
    s_load_dwordx2 s[8:9], s[0:1], {KA['Lim']}
    s_load_dwordx2 s[14:15], s[0:1], {KA['ldt']}
    s_load_dwordx2 s[16:17], s[0:1], {KA['ws']}
    s_lshr_b32 s56, s2, 1
    s_and_b32 s57, s2, 1
    s_lshl_b32 s57, s57, 8
    v_add_u32 v1, s57, v0            ; p
    s_waitcnt lgkmcnt(0)
    """)
    srd_from_ptr(a, 36, 16, SZ['BU'], WS['BU'])
    srd_from_ptr(a, 40, 16, SZ['E'], WS['E'])
    srd_from_ptr(a, 24, 16, SZ['HS'], WS['HS'])
    srd_from_ptr(a, 44, 6, 1024)
    srd_from_ptr(a, 48, 8, 1024)
    srd_from_ptr(a, 52, 14, 1024)
    a("""
    v_lshlrev_b32 v2, 1, v1          ; p*2
    v_lshlrev_b32 v3, 2, v1          ; p*4
    buffer_load_ushort v4, v2, s[44:47], 0 offen
    buffer_load_ushort v5, v2, s[48:51], 0 offen
    buffer_load_ushort v6, v2, s[52:55], 0 offen
    """)
    for c in range(60):
        a(f"s_mov_b32 s58, {c*4096}")
        a(f"buffer_load_dword v{64+2*c}, v3, s[40:43], s58 offen")
        a(f"buffer_load_dword v{65+2*c}, v3, s[40:43], s58 offen offset:2048")
    a("s_waitcnt vmcnt(60)")
    a("s_waitcnt vmcnt(0)")
    for r in (4, 5, 6):
        a(f"v_lshlrev_b32 v{r}, 16, v{r}")
    lam_coef(a, 4, 5, 6, 8, 9, 10, 11, 12)
    a("v_mov_b32 v20, v8")
    a("v_mov_b32 v21, v9")
    for i in range(5):
        cmul(a, 22, 23, 20, 21, 20, 21, 18)
        a("v_mov_b32 v20, v22")
        a("v_mov_b32 v21, v23")
    a("""
    v_mov_b32 v24, 0
    v_mov_b32 v25, 0
    s_lshl_b32 s58, s56, 2           ; n = 4g
    """)
    for c in range(60):
        a(f"s_cmp_le_u32 s58, {c}")
        a("s_cbranch_scc1 K1_SCAN_MAIN")
        a(f"""
        v_mul_f32 v18, v25, v21
        v_fma_f32 v18, v24, v20, -v18
        v_mul_f32 v19, v25, v20
        v_fma_f32 v19, v24, v21, v19
        v_add_f32 v24, v18, v{64+2*c}
        v_add_f32 v25, v19, v{65+2*c}
        """)
    a(f"""
    K1_SCAN_MAIN:
    s_lshl_b32 s59, s56, 19
    s_lshl_b32 s60, s56, 18
    """)
    def loads(setb):
        for i in range(8):
            a(f"buffer_load_dword v{setb+2*i}, v3, s[36:39], s59 offen")
            a(f"buffer_load_dword v{setb+2*i+1}, v3, s[36:39], s59 offen offset:2048")
            a("s_add_u32 s59, s59, 4096")
    def steps(setb):
        for i in range(8):
            a(f"""
            v_mul_f32 v18, v25, v9
            v_fma_f32 v18, v24, v8, -v18
            v_mul_f32 v19, v25, v8
            v_fma_f32 v19, v24, v9, v19
            v_add_f32 v24, v18, v{setb+2*i}
            v_add_f32 v25, v19, v{setb+2*i+1}
            v_cvt_pk_bf16_f32 v26, v24, v24
            v_cvt_pk_bf16_f32 v27, -v25, -v25
            buffer_store_short v26, v2, s[24:27], s60 offen
            buffer_store_short v27, v2, s[24:27], s60 offen offset:1024
            s_add_u32 s60, s60, 2048
            """)
    loads(32)
    for b in range(16):
        cur = 32 if b % 2 == 0 else 48
        nxt = 48 if b % 2 == 0 else 32
        if b < 15:
            loads(nxt)
            a("s_waitcnt vmcnt(16)")
        else:
            a("s_waitcnt vmcnt(0)")
        steps(cur)
    a("s_endpgm")

def gen_k1(a):
    a.raw(".p2align 8")
    a.raw(".type k1_kernel,@function")
    a.raw("k1_kernel:")
    a(f"""
    s_cmp_ge_u32 s2, {K1_GRID}
    s_cbranch_scc1 K1_EXIT
    s_cmp_lt_u32 s2, {NSCAN}
    s_cbranch_scc1 K1_SCAN
    s_load_dwordx2 s[16:17], s[0:1], {KA['ws']}
    v_and_b32 v1, 63, v0
    v_lshrrev_b32 v2, 6, v0
    s_sub_u32 s56, s2, {NSCAN}
    s_mul_i32 s57, s56, 4682
    s_lshr_b32 s57, s57, 16           ; rbk = j/14
    s_mul_i32 s58, s57, 14
    s_sub_u32 s58, s56, s58           ; cbk
    v_readfirstlane_b32 s59, v2       ; wave
    s_waitcnt lgkmcnt(0)
    """)
    srd_from_ptr(a, 20, 16, SZ['XN'], WS['XN'])
    srd_from_ptr(a, 24, 16, SZ['WT1'], WS['WT1'])
    srd_from_ptr(a, 28, 16, SZ['HG'], WS['HG'])
    a("""
    v_lshrrev_b32 v4, 3, v1
    v_and_b32 v5, 7, v1
    v_xor_b32 v5, v5, v4
    v_lshlrev_b32 v3, 10, v4
    v_lshl_add_u32 v3, v5, 4, v3
    """)
    a("""
    s_lshl_b32 s60, s57, 17
    s_lshl_b32 s61, s59, 15
    s_add_u32 s60, s60, s61           ; sA
    s_lshl_b32 s61, s58, 18
    s_lshl_b32 s62, s59, 16
    s_add_u32 s61, s61, s62           ; sB
    s_lshl_b32 s62, s59, 12           ; mA
    s_lshl_b32 s63, s59, 13
    s_add_u32 s63, s63, 16384         ; mB
    """)
    def dma(c):
        st = (c % 3) * 49152
        a(f"s_add_u32 s64, s60, {c*128}")
        a(f"s_add_u32 s65, s62, {st}")
        for i in range(4):
            a("s_mov_b32 m0, s65")
            a("s_nop 0")
            a("buffer_load_dwordx4 v3, s[20:23], s64 offen lds")
            if i < 3:
                a("s_add_u32 s64, s64, 8192")
                a("s_add_u32 s65, s65, 1024")
        a(f"s_add_u32 s64, s61, {c*128}")
        a(f"s_add_u32 s65, s63, {st}")
        for i in range(8):
            a("s_mov_b32 m0, s65")
            a("s_nop 0")
            a("buffer_load_dwordx4 v3, s[24:27], s64 offen lds")
            if i < 7:
                a("s_add_u32 s64, s64, 8192")
                a("s_add_u32 s65, s65, 1024")
    a("""
    v_and_b32 v16, 15, v1
    v_lshrrev_b32 v17, 4, v1
    v_and_b32 v18, 7, v1
    v_xor_b32 v19, v17, v18
    v_lshlrev_b32 v20, 7, v16
    v_lshl_add_u32 v21, v19, 4, v20        ; h0 base
    v_xor_b32 v19, 4, v19
    v_lshl_add_u32 v22, v19, 4, v20        ; h1 base
    s_lshr_b32 s64, s59, 1
    s_lshl_b32 s64, s64, 13                ; wm*8192
    s_and_b32 s65, s59, 1
    s_lshl_b32 s65, s65, 14
    s_add_u32 s65, s65, 16384              ; 16384 + wn*16384
    """)
    for s in range(3):
        a(f"v_add_u32 v{4+4*s}, s64, v21")
        a(f"v_add_u32 v{5+4*s}, s64, v22")
        a(f"v_add_u32 v{6+4*s}, s65, v21")
        a(f"v_add_u32 v{7+4*s}, s65, v22")
        if s:
            for k in range(4):
                a(f"v_add_u32 v{4+4*s+k}, {s*49152}, v{4+4*s+k}")
    for r in range(128):
        a(f"v_accvgpr_write_b32 a{r}, 0")
    SET = [16, 64]
    def reads(c, h, setb):
        s = c % 3
        for m in range(4):
            r0 = setb + 4*m
            a(f"ds_read_b128 v[{r0}:{r0+3}], v{4+4*s+h} offset:{m*2048}")
        for n in range(8):
            r0 = setb + 16 + 4*n
            a(f"ds_read_b128 v[{r0}:{r0+3}], v{6+4*s+h} offset:{n*2048}")
    def mfmas(setb):
        for m in range(4):
            for n in range(8):
                c = 4*(8*m+n)
                tr = setb + 4*m
                wr = setb + 16 + 4*n
                a(f"v_mfma_f32_16x16x32_bf16 a[{c}:{c+3}], v[{wr}:{wr+3}], v[{tr}:{tr+3}], a[{c}:{c+3}]")
    dma(0); dma(1)
    a("s_waitcnt vmcnt(12)")
    a("s_barrier")
    reads(0, 0, SET[0])
    for c in range(8):
        reads(c, 1, SET[1])
        a("s_waitcnt lgkmcnt(12)")
        mfmas(SET[0])
        if c < 7:
            a("s_waitcnt vmcnt(0)")
            a("s_barrier")
            if c + 2 <= 7:
                dma(c+2)
            reads(c+1, 0, SET[0])
            a("s_waitcnt lgkmcnt(12)")
        else:
            a("s_waitcnt lgkmcnt(0)")
        mfmas(SET[1])
    a("s_nop 7")
    a("s_nop 7")
    a("""
    s_lshl_b32 s64, s57, 7
    s_lshr_b32 s65, s59, 1
    s_lshl_b32 s65, s65, 6
    s_add_u32 s64, s64, s65
    s_mul_i32 s64, s64, 3584
    s_lshl_b32 s65, s58, 8
    s_add_u32 s64, s64, s65
    s_and_b32 s65, s59, 1
    s_lshl_b32 s65, s65, 7
    s_add_u32 s64, s64, s65
    v_and_b32 v16, 15, v1
    v_lshrrev_b32 v17, 4, v1
    v_mul_u32_u24 v112, 3584, v16
    v_lshl_add_u32 v112, v17, 3, v112
    v_add_u32 v112, s64, v112
    """)
    for m in range(4):
        for n in range(4):
            g = 4*(8*m+n)
            u = 4*(8*m+n+4)
            for r in range(4):
                a(f"v_accvgpr_read_b32 v{114+r}, a{g+r}")
                a(f"v_accvgpr_read_b32 v{118+r}, a{u+r}")
            for r in range(4):
                rne_bf16(a, 114+r, 114+r)
                rne_bf16(a, 118+r, 118+r)
                a(f"v_mul_f32 v{114+r}, v{114+r}, v{118+r}")
            a("v_cvt_pk_bf16_f32 v122, v114, v115")
            a("v_cvt_pk_bf16_f32 v123, v116, v117")
            a(f"v_add_u32 v113, {m*16*3584}, v112")
            a(f"buffer_store_dwordx2 v[122:123], v113, s[28:31], 0 offen offset:{n*32}")
            a("s_nop 1")
    a("s_endpgm")
    gen_scan(a)
    a("K1_EXIT:")
    a("s_endpgm")
    return kernel_desc("k1_kernel", 256, 70, 128)
```

```python
from common import *

K3_GRID = 256

def gen_k3(a):
    a.raw(".p2align 8")
    a.raw(".type k3_kernel,@function")
    a.raw("k3_kernel:")
    a(f"""
    s_cmp_ge_u32 s2, {K3_GRID}
    s_cbranch_scc1 K3_EXIT
    s_load_dwordx2 s[4:5], s[0:1], {KA['x']}
    s_load_dwordx2 s[6:7], s[0:1], {KA['Cre']}
    s_load_dwordx2 s[8:9], s[0:1], {KA['Cim']}
    s_load_dwordx2 s[10:11], s[0:1], {KA['Dskip']}
    s_load_dwordx2 s[12:13], s[0:1], {KA['out']}
    s_load_dwordx2 s[16:17], s[0:1], {KA['ws']}
    v_and_b32 v1, 63, v0
    v_lshrrev_b32 v2, 6, v0
    s_lshr_b32 s56, s2, 3
    s_and_b32 s57, s2, 7
    v_and_b32 v3, 15, v1
    v_lshrrev_b32 v4, 4, v1
    v_readfirstlane_b32 s58, v2
    s_waitcnt lgkmcnt(0)
    """)
    srd_from_ptr(a, 20, 16, SZ['HG'], WS['HG'])
    srd_from_ptr(a, 24, 16, SZ['WDT'], WS['WDT'])
    srd_from_ptr(a, 28, 16, SZ['HS'], WS['HS'])
    srd_from_ptr(a, 32, 6, 512*512*2)
    srd_from_ptr(a, 36, 8, 512*512*2)
    srd_from_ptr(a, 40, 4, 2048*512*2)
    srd_from_ptr(a, 44, 16, SZ['XN'], WS['XN'])
    srd_from_ptr(a, 48, 10, 1024)
    srd_from_ptr(a, 52, 12, 2048*512*4)
    a("""
    v_lshlrev_b32 v5, 5, v4
    v_mul_u32_u24 v6, 3584, v3
    v_add_u32 v6, v6, v5
    v_lshlrev_b32 v7, 11, v3
    v_add_u32 v7, v7, v5
    v_lshlrev_b32 v8, 10, v3
    v_add_u32 v8, v8, v5
    s_lshl_b32 s59, s56, 6
    s_mul_i32 s60, s59, 3584
    s_mul_i32 s61, s58, 896
    s_add_u32 s60, s60, s61
    s_lshl_b32 s62, s57, 6
    s_mul_i32 s62, s62, 3584
    s_add_u32 s62, s62, s61
    s_lshl_b32 s63, s59, 11
    s_lshl_b32 s61, s58, 8
    s_add_u32 s63, s63, s61
    s_lshl_b32 s64, s57, 16
    s_add_u32 s64, s64, s61
    """)
    for r in range(128):
        a(f"v_accvgpr_write_b32 a{r}, 0")
    units = [('d', u) for u in range(7)] + [('r', u) for u in range(2)] + [('i', u) for u in range(2)]
    ST = [64, 128, 192]
    def loads(idx):
        kind, u = units[idx]
        st = ST[idx % 3]
        for t in range(4):
            if kind == 'd':
                a(f"s_add_u32 s65, s60, {t*16*3584 + u*128}")
                a(f"s_add_u32 s66, s62, {t*16*3584 + u*128}")
                tv, tsrd, wv, wsrd = "v6", "s[20:23]", "v6", "s[24:27]"
            else:
                ko = 0 if kind == 'r' else 1024
                a(f"s_add_u32 s65, s63, {t*16*2048 + u*128 + ko}")
                a(f"s_add_u32 s66, s64, {t*16*1024 + u*128}")
                tv, tsrd, wv, wsrd = "v7", "s[28:31]", "v8", ("s[32:35]" if kind == 'r' else "s[36:39]")
            for h in range(2):
                r0 = st + 8*t + 4*h
                a(f"buffer_load_dwordx4 v[{r0}:{r0+3}], {tv}, {tsrd}, s65 offen offset:{h*16}")
                r1 = st + 32 + 8*t + 4*h
                a(f"buffer_load_dwordx4 v[{r1}:{r1+3}], {wv}, {wsrd}, s66 offen offset:{h*16}")
    loads(0); loads(1)
    for idx in range(11):
        if idx + 2 < 11:
            loads(idx+2)
        rem = min(10-idx, 2)*16
        a(f"s_waitcnt vmcnt({rem})")
        st = ST[idx % 3]
        ab = 0 if units[idx][0] == 'd' else 64
        for h in range(2):
            for m in range(4):
                for n in range(4):
                    c = ab + 4*(4*m+n)
                    tr = st + 8*m + 4*h
                    wr = st + 32 + 8*n + 4*h
                    a(f"v_mfma_f32_16x16x32_bf16 a[{c}:{c+3}], v[{wr}:{wr+3}], v[{tr}:{tr+3}], a[{c}:{c+3}]")
    a("s_nop 7")
    a("s_nop 7")
    a("""
    s_lshl_b32 s65, s58, 15
    v_lshlrev_b32 v9, 4, v1
    v_add_u32 v9, s65, v9
    """)
    for t in range(32):
        for r in range(4):
            a(f"v_accvgpr_read_b32 v{64+r}, a{4*t+r}")
        a(f"ds_write_b128 v9, v[64:67] offset:{t*1024}")
        a("s_nop 1")
    a("s_waitcnt lgkmcnt(0)")
    a("s_barrier")
    a("""
    s_lshl_b32 s65, s58, 12           ; m*4 tiles*1024
    v_lshlrev_b32 v9, 4, v1
    v_add_u32 v9, s65, v9
    s_lshl_b32 s65, s56, 6
    s_lshl_b32 s66, s58, 4
    s_add_u32 s65, s65, s66
    v_add_u32 v10, s65, v3            ; token
    s_lshl_b32 s66, s57, 6
    v_lshl_add_u32 v11, v4, 2, s66
    v_lshlrev_b32 v12, 10, v10
    v_lshl_add_u32 v12, v11, 1, v12
    v_lshlrev_b32 v13, 1, v11
    v_lshlrev_b32 v14, 11, v10
    v_lshl_add_u32 v14, v11, 2, v14
    v_add_u32 v15, 0x10000, v9
    """)
    for n in range(4):
        a(f"buffer_load_dwordx2 v[{16+2*n}:{17+2*n}], v12, s[40:43], 0 offen offset:{n*32}")
        a(f"buffer_load_dwordx2 v[{24+2*n}:{25+2*n}], v12, s[44:47], 0 offen offset:{n*32}")
        a(f"buffer_load_dwordx2 v[{32+2*n}:{33+2*n}], v13, s[48:51], 0 offen offset:{n*32}")
    for n in range(4):
        for which in range(2):
            dst = 64 + 4*which
            for sw in range(4):
                r0 = 72 + 4*sw
                a(f"ds_read_b128 v[{r0}:{r0+3}], {'v9' if sw < 2 else 'v15'} offset:{(sw%2)*32768 + which*16384 + n*1024}")
            a("s_waitcnt lgkmcnt(0)")
            for r in range(4):
                a(f"v_add_f32 v{dst+r}, v{72+r}, v{76+r}")
                a(f"v_add_f32 v{88+r}, v{80+r}, v{84+r}")
                a(f"v_add_f32 v{dst+r}, v{dst+r}, v{88+r}")
        if n == 0:
            a("s_waitcnt vmcnt(0)")
        for r in range(4):
            d, y = 64+r, 68+r
            def unpack(dst, base):
                src = base + (r >> 1)
                if r & 1: a(f"v_and_b32 v{dst}, 0xffff0000, v{src}")
                else: a(f"v_lshlrev_b32 v{dst}, 16, v{src}")
            unpack(92, 16+2*n); unpack(93, 24+2*n); unpack(94, 32+2*n)
            rne_bf16(a, d, d)
            a(f"v_mul_f32 v95, 0xbfb8aa3b, v{d}")
            a("v_exp_f32 v95, v95")
            a("s_nop 0")
            a("v_add_f32 v95, 1.0, v95")
            a("v_rcp_f32 v95, v95")
            a("s_nop 0")
            a(f"v_mul_f32 v95, v{d}, v95")
            rne_bf16(a, 95, 95)
            a("v_mul_f32 v93, v93, v94")
            rne_bf16(a, 93, 93)
            a(f"v_fma_f32 v93, 2.0, v{y}, v93")
            a(f"v_fma_f32 v{40+r}, v93, v95, v92")
        a(f"buffer_store_dwordx4 v[40:43], v14, s[52:55], 0 offen offset:{n*64}")
        a("s_nop 1")
    a("s_endpgm")
    a("K3_EXIT:")
    a("s_endpgm")
    return kernel_desc("k3_kernel", 384, 70, 256)
```

```python
import sys, json
from common import *
from k0 import *
from k1 import *
from k3 import *
HEADER = open("recurrent_scan__ssm_conv_s5__glu_gated_bilinear__prompt.s.ref").read().split("; Override launch geometry")[0]
def main(out, which):
    a = Asm()
    launches = []
    a.raw('.amdgcn_target "amdgcn-amd-amdhsa--gfx950"')
    a.raw(".text")
    descs = []
    if "k0" in which:
        launches.append(f"; @launch kernel=k0_kernel grid=({K0_GRID},1,1) block=(256,1,1) lds=131584")
        descs.append(gen_k0(a))
    if "k1" in which:
        launches.append(f"; @launch kernel=k1_kernel grid=({K1_GRID},1,1) block=(256,1,1) lds=147456")
        descs.append(gen_k1(a))
    if "k3" in which:
        launches.append(f"; @launch kernel=k3_kernel grid=({K3_GRID},1,1) block=(256,1,1) lds=131072")
        descs.append(gen_k3(a))
    a.raw('.section .rodata,"a"')
    for d in descs:
        a.raw(".p2align 6")
        a.raw(d.strip())
    txt = HEADER + "\n".join(launches) + "\n" + a.text()
    open(out, "w").write(txt)
if __name__ == "__main__":
    out = sys.argv[1]
    which = sys.argv[2].split(",")
    main(out, which)
    json.dump({k: v for k, v in WS.items()}, open("layout.json", "w"))
```

```python
from common import *

NT_WG = 672
K0_GRID = 256 + NT_WG

def gen_k0(a):
    a.raw(".p2align 8")
    a.raw(".type k0_kernel,@function")
    a.raw("k0_kernel:")
    a(f"""
    s_cmp_ge_u32 s2, {K0_GRID}
    s_cbranch_scc1 K0_EXIT
    s_cmp_ge_u32 s2, 256
    s_cbranch_scc1 K0_TRANS
    s_load_dwordx2 s[4:5], s[0:1], {KA['x']}
    s_load_dwordx2 s[6:7], s[0:1], {KA['Lre']}
    s_load_dwordx2 s[8:9], s[0:1], {KA['Lim']}
    s_load_dwordx2 s[10:11], s[0:1], {KA['Bre']}
    s_load_dwordx2 s[12:13], s[0:1], {KA['Bim']}
    s_load_dwordx2 s[14:15], s[0:1], {KA['ldt']}
    s_load_dwordx2 s[16:17], s[0:1], {KA['ws']}
    v_and_b32 v1, 63, v0
    v_lshrrev_b32 v2, 6, v0
    s_lshr_b32 s56, s2, 2
    s_and_b32 s57, s2, 3
    s_nop 0
    v_readfirstlane_b32 s58, v2
    s_waitcnt lgkmcnt(0)
    """)
    srd_from_ptr(a, 20, 4, 2048*512*2)
    srd_from_ptr(a, 24, 16, SZ['XN'], WS['XN'])
    srd_from_ptr(a, 28, 10, 512*512*2)
    srd_from_ptr(a, 32, 12, 512*512*2)
    srd_from_ptr(a, 36, 16, SZ['BU'], WS['BU'])
    srd_from_ptr(a, 40, 16, SZ['E'], WS['E'])
    srd_from_ptr(a, 44, 6, 1024)
    srd_from_ptr(a, 48, 8, 1024)
    srd_from_ptr(a, 52, 14, 1024)
    a(f"""
    s_lshl_b32 s59, s56, 5
    s_lshl_b32 s60, s58, 3
    s_add_u32 s59, s59, s60
    s_lshl_b32 s59, s59, 10
    s_add_u32 s60, s59, 4096
    v_lshlrev_b32 v3, 4, v1
    """)
    for i in range(8):
        so = "s59" if i < 4 else "s60"
        a(f"buffer_load_dwordx4 v[{16+4*i}:{19+4*i}], v3, s[20:23], {so} offen offset:{(i%4)*1024}")
    for i in range(8):
        a(f"s_waitcnt vmcnt({7-i})")
        for d in range(4):
            src = 16+4*i+d
            f = 48+8*i+2*d
            a(f"v_lshlrev_b32 v{f}, 16, v{src}")
            a(f"v_and_b32 v{f+1}, 0xffff0000, v{src}")
        s1, s2_ = 112+i, 120+i
        f = 48+8*i
        a(f"v_add_f32 v{s1}, v{f}, v{f+1}")
        a(f"v_mul_f32 v{s2_}, v{f}, v{f}")
        a(f"v_fma_f32 v{s2_}, v{f+1}, v{f+1}, v{s2_}")
        for j in range(2, 8):
            a(f"v_add_f32 v{s1}, v{s1}, v{f+j}")
            a(f"v_fma_f32 v{s2_}, v{f+j}, v{f+j}, v{s2_}")
    vals = list(range(112, 128))
    for ctrl in ["quad_perm:[1,0,3,2]", "quad_perm:[2,3,0,1]", "row_ror:4", "row_ror:8"]:
        for v in vals:
            a(f"v_add_f32_dpp v{v}, v{v}, v{v} {ctrl} row_mask:0xf bank_mask:0xf")
    for sw in ["v_permlane16_swap_b32", "v_permlane32_swap_b32"]:
        for v in vals:
            t = 128 + (v - 112)
            a(f"v_mov_b32 v{t}, v{v}")
        a("s_nop 1")
        for v in vals:
            t = 128 + (v - 112)
            a(f"{sw} v{v}, v{t}")
        for v in vals:
            t = 128 + (v - 112)
            a(f"v_add_f32 v{v}, v{v}, v{t}")
    a("v_mov_b32 v144, 0x3b000000")
    for i in range(8):
        s1, s2_ = 112+i, 120+i
        a(f"v_mul_f32 v{s1}, v{s1}, v144")
        a(f"v_mul_f32 v{s2_}, v{s2_}, v144")
        a(f"v_fma_f32 v{s2_}, -v{s1}, v{s1}, v{s2_}")
        a(f"v_max_f32 v{s2_}, 0, v{s2_}")
        rne_bf16(a, s1, s1)
        rne_bf16(a, s2_, s2_)
        a(f"v_add_f32 v{s2_}, 0x3727c5ac, v{s2_}")
        rne_bf16(a, s2_, s2_)
        a(f"v_sqrt_f32 v{s2_}, v{s2_}")
        a("s_nop 0")
        rne_bf16(a, s2_, s2_)
        a(f"v_rcp_f32 v{s2_}, v{s2_}")
    a("s_nop 0")
    a(f"""
    s_mul_i32 s61, s58, {8*1040}
    v_lshlrev_b32 v4, 4, v1
    v_add_u32 v4, s61, v4
    """)
    for i in range(8):
        m, ri = 112+i, 120+i
        for d in range(4):
            f = 48+8*i+2*d
            dst = 16+4*i+d
            a(f"v_sub_f32 v{f}, v{f}, v{m}")
            a(f"v_sub_f32 v{f+1}, v{f+1}, v{m}")
            a(f"v_cvt_pk_bf16_f32 v{dst}, v{f}, v{f+1}")
            a(f"v_lshlrev_b32 v{f}, 16, v{dst}")
            a(f"v_and_b32 v{f+1}, 0xffff0000, v{dst}")
            a(f"v_mul_f32 v{f}, v{f}, v{ri}")
            a(f"v_mul_f32 v{f+1}, v{f+1}, v{ri}")
            a(f"v_cvt_pk_bf16_f32 v{dst}, v{f}, v{f+1}")
        a(f"ds_write_b128 v4, v[{16+4*i}:{19+4*i}] offset:{i*1040}")
    a("""
    s_cmp_eq_u32 s57, 0
    s_cbranch_scc0 K0_NOXN
    """)
    for i in range(8):
        so = "s59" if i < 4 else "s60"
        a(f"buffer_store_dwordx4 v[{16+4*i}:{19+4*i}], v3, s[24:27], {so} offen offset:{(i%4)*1024}")
    a("K0_NOXN:")
    a("s_waitcnt vmcnt(0) lgkmcnt(0)")
    a("s_barrier")
    a(f"""
    v_and_b32 v7, 15, v1
    v_lshrrev_b32 v8, 4, v1
    s_lshl_b32 s61, s57, 7
    s_lshl_b32 s62, s58, 5
    s_add_u32 s61, s61, s62
    v_add_u32 v5, s61, v7
    v_lshlrev_b32 v5, 10, v5
    v_lshlrev_b32 v9, 5, v8
    v_add_u32 v5, v5, v9
    v_mul_u32_u24 v6, 1040, v7
    v_add_u32 v6, v6, v9
    s_movk_i32 s62, 0x4000
    """)
    ACC = 16
    for r in range(32):
        a(f"v_mov_b32 v{ACC+r}, 0")
    AF = 48
    BF = 64
    a("""
    v_lshrrev_b32 v10, 3, v1
    v_and_b32 v11, 7, v1
    v_xor_b32 v11, v11, v10
    v_lshlrev_b32 v5, 10, v10
    v_lshl_add_u32 v5, v11, 4, v5
    v_and_b32 v11, 7, v1
    v_xor_b32 v11, v8, v11
    v_lshlrev_b32 v12, 7, v7
    v_lshl_add_u32 v13, v11, 4, v12
    v_xor_b32 v11, 4, v11
    v_lshl_add_u32 v14, v11, 4, v12
    s_mul_i32 s66, s58, 24576
    s_add_u32 s66, s66, 33280
    v_add_u32 v13, s66, v13
    v_add_u32 v14, s66, v14
    s_lshl_b32 s67, s61, 10
    v_lshl_add_u32 v6, v8, 4, 0
    v_mul_u32_u24 v10, 1040, v7
    v_add_u32 v6, v6, v10
    """)
    def bloads(u):
        a(f"s_add_u32 s68, s66, {(u % 3) * 8192}")
        for i in range(8):
            srd = "s[28:31]" if i < 4 else "s[32:35]"
            a(f"s_add_u32 s69, s67, {(i % 4) * 8192 + u*128}")
            a("s_mov_b32 m0, s68")
            a("s_add_u32 s68, s68, 1024")
            a(f"buffer_load_dwordx4 v5, {srd}, s69 offen lds")
    bloads(0); bloads(1)
    for u in range(8):
        if u + 2 < 8:
            bloads(u+2)
        a(f"s_waitcnt vmcnt({min(7-u, 2)*8})")
        so = (u % 3) * 8192
        for h in range(2):
            for m in range(2):
                r0 = AF + 8*m + 4*h
                a(f"ds_read_b128 v[{r0}:{r0+3}], v6 offset:{m*16*1040 + u*128 + h*64}")
            for n in range(4):
                r0 = BF + 16*h + 4*n
                a(f"ds_read_b128 v[{r0}:{r0+3}], {'v13' if h == 0 else 'v14'} offset:{so + n*2048}")
        a("s_waitcnt lgkmcnt(0)")
        for h in range(2):
            for m in range(2):
                for n in range(4):
                    c = ACC + 4*(4*m+n)
                    ar = AF + 8*m + 4*h
                    br = BF + 16*h + 4*n
                    a(f"v_mfma_f32_16x16x32_bf16 v[{c}:{c+3}], v[{ar}:{ar+3}], v[{br}:{br+3}], v[{c}:{c+3}]")
    a("s_nop 7")
    a("s_nop 7")
    a(f"""
    v_add_u32 v64, s61, v7
    v_lshlrev_b32 v64, 1, v64
    buffer_load_ushort v66, v64, s[44:47], 0 offen
    buffer_load_ushort v67, v64, s[48:51], 0 offen
    buffer_load_ushort v68, v64, s[52:55], 0 offen
    buffer_load_ushort v69, v64, s[44:47], 0 offen offset:32
    buffer_load_ushort v70, v64, s[48:51], 0 offen offset:32
    buffer_load_ushort v71, v64, s[52:55], 0 offen offset:32
    s_waitcnt vmcnt(0)
    """)
    for r in range(66, 72):
        a(f"v_lshlrev_b32 v{r}, 16, v{r}")
    for j in range(2):
        lam_coef(a, 66+3*j, 67+3*j, 68+3*j, 72+4*j, 73+4*j, 74+4*j, 75+4*j, 80)
    a(f"""
    s_lshl_b32 s63, s56, 17
    v_lshlrev_b32 v90, 14, v8
    v_add_u32 v90, s63, v90
    v_add_u32 v91, s61, v7
    v_lshlrev_b32 v91, 2, v91
    v_add_u32 v90, v90, v91
    """)
    for j in range(2):
        lr, li, cr, ci = 72+4*j, 73+4*j, 74+4*j, 75+4*j
        er, ei = 100+2*j, 101+2*j
        cmul(a, 92, 93, lr, li, lr, li, 89)
        cmul(a, 94, 95, 92, 93, 92, 93, 89)
        cmul(a, 96, 97, 94, 95, 94, 95, 89)
        cmul(a, 98, 99, 96, 97, 94, 95, 89)
        cmul(a, 86, 87, 98, 99, lr, li, 89)
        first = True
        for m in range(2):
            for r in range(4):
                R = ACC + 4*(4*m + j) + r
                I = ACC + 4*(4*m + 2 + j) + r
                a(f"v_mul_f32 v104, v{ci}, v{I}")
                a(f"v_fma_f32 v104, v{cr}, v{R}, -v104")
                a(f"v_mul_f32 v105, v{ci}, v{R}")
                a(f"v_fma_f32 v105, v{cr}, v{I}, v105")
                off = m*65536 + r*4096 + j*64
                a(f"v_add_u32 v106, 0x{off:x}, v90")
                a(f"buffer_store_dword v104, v106, s[36:39], 0 offen")
                a(f"buffer_store_dword v105, v106, s[36:39], 0 offen offset:2048")
                if first:
                    a(f"v_mov_b32 v{er}, v104")
                    a(f"v_mov_b32 v{ei}, v105")
                    first = False
                else:
                    pr, pi = (86, 87) if (m == 1 and r == 0) else (lr, li)
                    a(f"v_mul_f32 v107, v{ei}, v{pi}")
                    a(f"v_fma_f32 v107, v{er}, v{pr}, -v107")
                    a(f"v_mul_f32 v108, v{ei}, v{pr}")
                    a(f"v_fma_f32 v108, v{er}, v{pi}, v108")
                    a(f"v_add_f32 v{er}, v107, v104")
                    a(f"v_add_f32 v{ei}, v108, v105")
        a(f"""
        v_mov_b32 v107, 1.0
        v_mov_b32 v108, 0
        v_cmp_eq_u32 vcc, 2, v8
        s_nop 1
        v_cndmask_b32 v107, v107, v94, vcc
        v_cndmask_b32 v108, v108, v95, vcc
        v_cmp_eq_u32 vcc, 1, v8
        s_nop 1
        v_cndmask_b32 v107, v107, v96, vcc
        v_cndmask_b32 v108, v108, v97, vcc
        v_cmp_eq_u32 vcc, 0, v8
        s_nop 1
        v_cndmask_b32 v107, v107, v98, vcc
        v_cndmask_b32 v108, v108, v99, vcc
        """)
        cmul(a, 109, 110, er, ei, 107, 108, 89)
        a(f"v_mov_b32 v{er}, v109")
        a(f"v_mov_b32 v{ei}, v110")
    for sw in ["v_permlane16_swap_b32", "v_permlane32_swap_b32"]:
        for v in range(100, 104):
            a(f"v_mov_b32 v{v+12}, v{v}")
        a("s_nop 1")
        for v in range(100, 104):
            a(f"{sw} v{v}, v{v+12}")
        for v in range(100, 104):
            a(f"v_add_f32 v{v}, v{v}, v{v+12}")
    a(f"""
    s_lshl_b32 s63, s56, 12
    v_add_u32 v91, s61, v7
    v_lshlrev_b32 v91, 2, v91
    v_add_u32 v91, s63, v91
    v_cmp_gt_u32 vcc, 16, v1
    s_and_saveexec_b64 s[64:65], vcc
    buffer_store_dword v100, v91, s[40:43], 0 offen
    buffer_store_dword v101, v91, s[40:43], 0 offen offset:2048
    buffer_store_dword v102, v91, s[40:43], 0 offen offset:64
    buffer_store_dword v103, v91, s[40:43], 0 offen offset:2112
    s_mov_b64 exec, s[64:65]
    s_endpgm
    """)
    a("K0_TRANS:")
    a(f"""
    s_load_dwordx2 s[4:5], s[0:1], {KA['Wg']}
    s_load_dwordx2 s[6:7], s[0:1], {KA['Wu']}
    s_load_dwordx2 s[8:9], s[0:1], {KA['Wd']}
    s_load_dwordx2 s[16:17], s[0:1], {KA['ws']}
    s_sub_u32 s56, s2, 256
    v_lshrrev_b32 v1, 3, v0
    v_and_b32 v2, 7, v0
    v_mul_u32_u24 v3, {8*144}, v2
    v_lshl_add_u32 v3, v1, 1, v3
    v_mul_u32_u24 v4, 144, v1
    v_lshl_add_u32 v4, v2, 4, v4
    s_waitcnt lgkmcnt(0)
    s_cmp_ge_u32 s56, 448
    s_cbranch_scc1 K0_T_DOWN
    """)
    srd_from_ptr(a, 24, 16, SZ['WT1'], WS['WT1'])
    a("""
    s_cmp_ge_u32 s56, 224
    s_cbranch_scc1 K0_T_UP
    """)
    srd_from_ptr(a, 20, 4, 512*1792*2)
    a("""
    s_mov_b32 s57, 0
    s_branch K0_T_GU
    K0_T_UP:
    """)
    srd_from_ptr(a, 20, 6, 512*1792*2)
    a(f"""
    s_sub_u32 s56, s56, 224
    s_mov_b32 s57, 64
    K0_T_GU:
    s_and_b32 s58, s56, 7
    s_lshr_b32 s59, s56, 3
    s_mul_i32 s60, s58, {64*3584}
    s_lshl_b32 s61, s59, 7
    s_add_u32 s60, s60, s61
    v_mul_u32_u24 v5, 3584, v1
    v_lshl_add_u32 v5, v2, 4, v5
    s_mov_b32 s62, {32*3584}
    s_lshl_b32 s61, s59, 7
    s_add_u32 s61, s61, s57
    s_lshl_b32 s61, s61, 10
    s_lshl_b32 s63, s58, 7
    s_add_u32 s61, s61, s63
    v_lshlrev_b32 v6, 10, v1
    v_lshl_add_u32 v6, v2, 4, v6
    s_mov_b32 s63, {32*1024}
    s_branch K0_T_BODY
    K0_T_DOWN:
    """)
    srd_from_ptr(a, 24, 16, SZ['WDT'], WS['WDT'])
    srd_from_ptr(a, 20, 8, 1792*512*2)
    a(f"""
    s_sub_u32 s56, s56, 448
    s_and_b32 s59, s56, 7
    s_lshr_b32 s58, s56, 3
    s_lshl_b32 s60, s58, 16
    s_lshl_b32 s61, s59, 7
    s_add_u32 s60, s60, s61
    v_lshlrev_b32 v5, 10, v1
    v_lshl_add_u32 v5, v2, 4, v5
    s_mov_b32 s62, {32*1024}
    s_mul_i32 s61, s59, {64*3584}
    s_lshl_b32 s63, s58, 7
    s_add_u32 s61, s61, s63
    v_mul_u32_u24 v6, 3584, v1
    v_lshl_add_u32 v6, v2, 4, v6
    s_mov_b32 s63, {32*3584}
    K0_T_BODY:
    buffer_load_dwordx4 v[8:11], v5, s[20:23], s60 offen
    s_add_u32 s60, s60, s62
    buffer_load_dwordx4 v[12:15], v5, s[20:23], s60 offen
    """)
    for half in range(2):
        a(f"s_waitcnt vmcnt({1-half})")
        for d in range(4):
            r = 8 + 4*half + d
            a(f"ds_write_b16 v3, v{r} offset:{(2*d)*144 + half*64}")
            a(f"ds_write_b16_d16_hi v3, v{r} offset:{(2*d+1)*144 + half*64}")
    a("""
    s_waitcnt lgkmcnt(0)
    s_barrier
    ds_read_b128 v[8:11], v4
    ds_read_b128 v[12:15], v4 offset:4608
    s_waitcnt lgkmcnt(1)
    buffer_store_dwordx4 v[8:11], v6, s[24:27], s61 offen
    s_add_u32 s61, s61, s63
    s_waitcnt lgkmcnt(0)
    buffer_store_dwordx4 v[12:15], v6, s[24:27], s61 offen
    K0_EXIT:
    s_endpgm
    """)
    return kernel_desc("k0_kernel", 160, 70, 160)
```

```python
from common import *

K1_GRID = 256
NSCAN = 32

def gen_scan(a):
    a(f"""
    K1_SCAN:
    s_load_dwordx2 s[6:7], s[0:1], {KA['Lre']}
    s_load_dwordx2 s[8:9], s[0:1], {KA['Lim']}
    s_load_dwordx2 s[14:15], s[0:1], {KA['ldt']}
    s_load_dwordx2 s[16:17], s[0:1], {KA['ws']}
    s_lshr_b32 s56, s2, 1
    s_and_b32 s57, s2, 1
    s_lshl_b32 s57, s57, 8
    v_add_u32 v1, s57, v0            ; p
    s_waitcnt lgkmcnt(0)
    """)
    srd_from_ptr(a, 36, 16, SZ['BU'], WS['BU'])
    srd_from_ptr(a, 40, 16, SZ['E'], WS['E'])
    srd_from_ptr(a, 24, 16, SZ['HS'], WS['HS'])
    srd_from_ptr(a, 44, 6, 1024)
    srd_from_ptr(a, 48, 8, 1024)
    srd_from_ptr(a, 52, 14, 1024)
    a("""
    v_lshlrev_b32 v2, 1, v1          ; p*2
    v_lshlrev_b32 v3, 2, v1          ; p*4
    buffer_load_ushort v4, v2, s[44:47], 0 offen
    buffer_load_ushort v5, v2, s[48:51], 0 offen
    buffer_load_ushort v6, v2, s[52:55], 0 offen
    """)
    for c in range(60):
        a(f"s_mov_b32 s58, {c*4096}")
        a(f"buffer_load_dword v{64+2*c}, v3, s[40:43], s58 offen")
        a(f"buffer_load_dword v{65+2*c}, v3, s[40:43], s58 offen offset:2048")
    a("s_waitcnt vmcnt(60)")
    a("s_waitcnt vmcnt(0)")
    for r in (4, 5, 6):
        a(f"v_lshlrev_b32 v{r}, 16, v{r}")
    lam_coef(a, 4, 5, 6, 8, 9, 10, 11, 12)
    a("v_mov_b32 v20, v8")
    a("v_mov_b32 v21, v9")
    for i in range(5):
        cmul(a, 22, 23, 20, 21, 20, 21, 18)
        a("v_mov_b32 v20, v22")
        a("v_mov_b32 v21, v23")
    a("""
    v_mov_b32 v24, 0
    v_mov_b32 v25, 0
    s_lshl_b32 s58, s56, 2           ; n = 4g
    """)
    for c in range(60):
        a(f"s_cmp_le_u32 s58, {c}")
        a("s_cbranch_scc1 K1_SCAN_MAIN")
        a(f"""
        v_mul_f32 v18, v25, v21
        v_fma_f32 v18, v24, v20, -v18
        v_mul_f32 v19, v25, v20
        v_fma_f32 v19, v24, v21, v19
        v_add_f32 v24, v18, v{64+2*c}
        v_add_f32 v25, v19, v{65+2*c}
        """)
    a(f"""
    K1_SCAN_MAIN:
    s_lshl_b32 s59, s56, 19
    s_lshl_b32 s60, s56, 18
    """)
    def loads(setb):
        for i in range(8):
            a(f"buffer_load_dword v{setb+2*i}, v3, s[36:39], s59 offen")
            a(f"buffer_load_dword v{setb+2*i+1}, v3, s[36:39], s59 offen offset:2048")
            a("s_add_u32 s59, s59, 4096")
    def steps(setb):
        for i in range(8):
            a(f"""
            v_mul_f32 v18, v25, v9
            v_fma_f32 v18, v24, v8, -v18
            v_mul_f32 v19, v25, v8
            v_fma_f32 v19, v24, v9, v19
            v_add_f32 v24, v18, v{setb+2*i}
            v_add_f32 v25, v19, v{setb+2*i+1}
            v_cvt_pk_bf16_f32 v26, v24, v24
            v_cvt_pk_bf16_f32 v27, -v25, -v25
            buffer_store_short v26, v2, s[24:27], s60 offen
            buffer_store_short v27, v2, s[24:27], s60 offen offset:1024
            s_add_u32 s60, s60, 2048
            """)
    SETS = [32, 48, 64]
    loads(SETS[0]); loads(SETS[1])
    for b in range(16):
        n = 0
        if b + 2 < 16:
            loads(SETS[(b+2) % 3]); n += 16
        if b + 1 < 16: n += 16
        if b >= 1: n += 16
        a(f"s_waitcnt vmcnt({n})")
        steps(SETS[b % 3])
    a("s_endpgm")

def gen_k1(a):
    a.raw(".p2align 8")
    a.raw(".type k1_kernel,@function")
    a.raw("k1_kernel:")
    a(f"""
    s_cmp_ge_u32 s2, {K1_GRID}
    s_cbranch_scc1 K1_EXIT
    s_cmp_lt_u32 s2, {NSCAN}
    s_cbranch_scc1 K1_SCAN
    s_load_dwordx2 s[16:17], s[0:1], {KA['ws']}
    v_and_b32 v1, 63, v0
    v_lshrrev_b32 v2, 6, v0
    s_sub_u32 s56, s2, {NSCAN}
    s_and_b32 s57, s56, 7
    s_lshl_b32 s57, s57, 1            ; 2*xcd
    s_lshr_b32 s58, s56, 3            ; li
    s_cmp_ge_u32 s58, 14
    s_cbranch_scc0 K1_NOADJ
    s_add_u32 s57, s57, 1
    s_sub_u32 s58, s58, 14
    K1_NOADJ:
    v_readfirstlane_b32 s59, v2       ; wave
    s_waitcnt lgkmcnt(0)
    """)
    srd_from_ptr(a, 20, 16, SZ['XN'], WS['XN'])
    srd_from_ptr(a, 24, 16, SZ['WT1'], WS['WT1'])
    srd_from_ptr(a, 28, 16, SZ['HG'], WS['HG'])
    a("""
    v_lshrrev_b32 v4, 3, v1
    v_and_b32 v5, 7, v1
    v_xor_b32 v5, v5, v4
    v_lshlrev_b32 v3, 10, v4
    v_lshl_add_u32 v3, v5, 4, v3
    """)
    a("""
    s_lshl_b32 s60, s57, 17
    s_lshl_b32 s61, s59, 15
    s_add_u32 s60, s60, s61           ; sA
    s_lshl_b32 s61, s58, 18
    s_lshl_b32 s62, s59, 16
    s_add_u32 s61, s61, s62           ; sB
    s_lshl_b32 s62, s59, 12           ; mA
    s_lshl_b32 s63, s59, 13
    s_add_u32 s63, s63, 16384         ; mB
    """)
    def dma(c):
        st = (c % 3) * 49152
        a(f"s_add_u32 s64, s60, {c*128}")
        a(f"s_add_u32 s65, s62, {st}")
        for i in range(4):
            a("s_mov_b32 m0, s65")
            a("s_nop 0")
            a("buffer_load_dwordx4 v3, s[20:23], s64 offen lds")
            if i < 3:
                a("s_add_u32 s64, s64, 8192")
                a("s_add_u32 s65, s65, 1024")
        a(f"s_add_u32 s64, s61, {c*128}")
        a(f"s_add_u32 s65, s63, {st}")
        for i in range(8):
            a("s_mov_b32 m0, s65")
            a("s_nop 0")
            a("buffer_load_dwordx4 v3, s[24:27], s64 offen lds")
            if i < 7:
                a("s_add_u32 s64, s64, 8192")
                a("s_add_u32 s65, s65, 1024")
    a("""
    v_and_b32 v16, 15, v1
    v_lshrrev_b32 v17, 4, v1
    v_and_b32 v18, 7, v1
    v_xor_b32 v19, v17, v18
    v_lshlrev_b32 v20, 7, v16
    v_lshl_add_u32 v21, v19, 4, v20        ; h0 base
    v_xor_b32 v19, 4, v19
    v_lshl_add_u32 v22, v19, 4, v20        ; h1 base
    s_lshr_b32 s64, s59, 1
    s_lshl_b32 s64, s64, 13                ; wm*8192
    s_and_b32 s65, s59, 1
    s_lshl_b32 s65, s65, 14
    s_add_u32 s65, s65, 16384              ; 16384 + wn*16384
    """)
    for s in range(3):
        a(f"v_add_u32 v{4+4*s}, s64, v21")
        a(f"v_add_u32 v{5+4*s}, s64, v22")
        a(f"v_add_u32 v{6+4*s}, s65, v21")
        a(f"v_add_u32 v{7+4*s}, s65, v22")
        if s:
            for k in range(4):
                a(f"v_add_u32 v{4+4*s+k}, {s*49152}, v{4+4*s+k}")
    for r in range(128):
        a(f"v_accvgpr_write_b32 a{r}, 0")
    SET = [16, 64]
    def reads(c, h, setb):
        s = c % 3
        for m in range(4):
            r0 = setb + 4*m
            a(f"ds_read_b128 v[{r0}:{r0+3}], v{4+4*s+h} offset:{m*2048}")
        for n in range(8):
            r0 = setb + 16 + 4*n
            a(f"ds_read_b128 v[{r0}:{r0+3}], v{6+4*s+h} offset:{n*2048}")
    def mfmas(setb):
        for m in range(4):
            for n in range(8):
                c = 4*(8*m+n)
                tr = setb + 4*m
                wr = setb + 16 + 4*n
                a(f"v_mfma_f32_16x16x32_bf16 a[{c}:{c+3}], v[{wr}:{wr+3}], v[{tr}:{tr+3}], a[{c}:{c+3}]")
    dma(0); dma(1)
    for c in range(8):
        a(f"s_waitcnt vmcnt({12 if c < 7 else 0})")
        a("s_barrier")
        if c + 2 <= 7:
            dma(c+2)
        reads(c, 0, SET[0])
        reads(c, 1, SET[1])
        a("s_waitcnt lgkmcnt(12)")
        mfmas(SET[0])
        a("s_waitcnt lgkmcnt(0)")
        mfmas(SET[1])
    a("s_nop 7")
    a("s_nop 7")
    a("""
    s_lshl_b32 s64, s57, 7
    s_lshr_b32 s65, s59, 1
    s_lshl_b32 s65, s65, 6
    s_add_u32 s64, s64, s65
    s_mul_i32 s64, s64, 3584
    s_lshl_b32 s65, s58, 8
    s_add_u32 s64, s64, s65
    s_and_b32 s65, s59, 1
    s_lshl_b32 s65, s65, 7
    s_add_u32 s64, s64, s65
    v_and_b32 v16, 15, v1
    v_lshrrev_b32 v17, 4, v1
    v_mul_u32_u24 v112, 3584, v16
    v_lshl_add_u32 v112, v17, 3, v112
    v_add_u32 v112, s64, v112
    """)
    for m in range(4):
        for n in range(4):
            g = 4*(8*m+n)
            u = 4*(8*m+n+4)
            for r in range(4):
                a(f"v_accvgpr_read_b32 v{114+r}, a{g+r}")
                a(f"v_accvgpr_read_b32 v{118+r}, a{u+r}")
            for r in range(4):
                rne_bf16(a, 114+r, 114+r)
                rne_bf16(a, 118+r, 118+r)
                a(f"v_mul_f32 v{114+r}, v{114+r}, v{118+r}")
            a("v_cvt_pk_bf16_f32 v122, v114, v115")
            a("v_cvt_pk_bf16_f32 v123, v116, v117")
            a(f"v_add_u32 v113, {m*16*3584}, v112")
            a(f"buffer_store_dwordx2 v[122:123], v113, s[28:31], 0 offen offset:{n*32}")
            a("s_nop 1")
    a("s_endpgm")
    gen_scan(a)
    a("K1_EXIT:")
    a("s_endpgm")
    return kernel_desc("k1_kernel", 256, 70, 128)
```

```python
from common import *

K3_GRID = 256

def gen_k3(a):
    a.raw(".p2align 8")
    a.raw(".type k3_kernel,@function")
    a.raw("k3_kernel:")
    a(f"""
    s_cmp_ge_u32 s2, {K3_GRID}
    s_cbranch_scc1 K3_EXIT
    s_load_dwordx2 s[4:5], s[0:1], {KA['x']}
    s_load_dwordx2 s[6:7], s[0:1], {KA['Cre']}
    s_load_dwordx2 s[8:9], s[0:1], {KA['Cim']}
    s_load_dwordx2 s[10:11], s[0:1], {KA['Dskip']}
    s_load_dwordx2 s[12:13], s[0:1], {KA['out']}
    s_load_dwordx2 s[16:17], s[0:1], {KA['ws']}
    v_and_b32 v1, 63, v0
    v_lshrrev_b32 v2, 6, v0
    s_and_b32 s56, s2, 7
    s_lshl_b32 s56, s56, 2
    s_lshr_b32 s57, s2, 3
    s_and_b32 s59, s57, 3
    s_add_u32 s56, s56, s59
    s_lshr_b32 s57, s2, 5
    v_and_b32 v3, 15, v1
    v_lshrrev_b32 v4, 4, v1
    v_readfirstlane_b32 s58, v2
    s_waitcnt lgkmcnt(0)
    """)
    srd_from_ptr(a, 20, 16, SZ['HG'], WS['HG'])
    srd_from_ptr(a, 24, 16, SZ['WDT'], WS['WDT'])
    srd_from_ptr(a, 28, 16, SZ['HS'], WS['HS'])
    srd_from_ptr(a, 32, 6, 512*512*2)
    srd_from_ptr(a, 36, 8, 512*512*2)
    srd_from_ptr(a, 40, 4, 2048*512*2)
    srd_from_ptr(a, 44, 16, SZ['XN'], WS['XN'])
    srd_from_ptr(a, 48, 10, 1024)
    srd_from_ptr(a, 52, 12, 2048*512*4)
    a("""
    v_lshlrev_b32 v5, 5, v4
    v_mul_u32_u24 v6, 3584, v3
    v_add_u32 v6, v6, v5
    v_lshlrev_b32 v7, 11, v3
    v_add_u32 v7, v7, v5
    v_lshlrev_b32 v8, 10, v3
    v_add_u32 v8, v8, v5
    s_lshl_b32 s59, s56, 6
    s_mul_i32 s60, s59, 3584
    s_mul_i32 s61, s58, 896
    s_add_u32 s60, s60, s61
    s_lshl_b32 s62, s57, 6
    s_mul_i32 s62, s62, 3584
    s_add_u32 s62, s62, s61
    s_lshl_b32 s63, s59, 11
    s_lshl_b32 s61, s58, 8
    s_add_u32 s63, s63, s61
    s_lshl_b32 s64, s57, 16
    s_add_u32 s64, s64, s61
    """)
    for r in range(128):
        a(f"v_accvgpr_write_b32 a{r}, 0")
    units = [('d', u) for u in range(7)] + [('r', u) for u in range(2)] + [('i', u) for u in range(2)]
    a("""
    v_lshrrev_b32 v9, 3, v1
    v_and_b32 v10, 7, v1
    v_xor_b32 v10, v10, v9
    v_lshlrev_b32 v10, 4, v10
    v_mul_u32_u24 v6, 3584, v9
    v_add_u32 v6, v6, v10
    v_lshlrev_b32 v7, 11, v9
    v_add_u32 v7, v7, v10
    v_lshlrev_b32 v8, 10, v9
    v_add_u32 v8, v8, v10
    v_and_b32 v10, 7, v1
    v_xor_b32 v11, v4, v10
    v_lshlrev_b32 v12, 7, v3
    v_lshl_add_u32 v13, v11, 4, v12
    v_xor_b32 v11, 4, v11
    v_lshl_add_u32 v14, v11, 4, v12
    s_lshl_b32 s67, s58, 15
    v_add_u32 v13, s67, v13
    v_add_u32 v14, s67, v14
    """)
    def loads(idx):
        kind, u = units[idx]
        so = (idx % 2) * 16384
        a(f"s_add_u32 s68, s67, {so}")
        for op in range(2):
            for i in range(8):
                if kind == 'd':
                    a(f"s_add_u32 s65, {'s60' if op == 0 else 's62'}, {i*8*3584 + u*128}")
                    vv, srd = "v6", ("s[20:23]" if op == 0 else "s[24:27]")
                else:
                    ko = 0 if kind == 'r' else 1024
                    if op == 0:
                        a(f"s_add_u32 s65, s63, {i*8*2048 + u*128 + ko}")
                        vv, srd = "v7", "s[28:31]"
                    else:
                        a(f"s_add_u32 s65, s64, {i*8*1024 + u*128}")
                        vv, srd = "v8", ("s[32:35]" if kind == 'r' else "s[36:39]")
                a("s_mov_b32 m0, s68")
                a("s_add_u32 s68, s68, 1024")
                a(f"buffer_load_dwordx4 {vv}, {srd}, s65 offen lds")
    loads(0)
    for idx in range(11):
        if idx + 1 < 11:
            loads(idx+1)
            a("s_waitcnt vmcnt(16)")
        else:
            a("s_waitcnt vmcnt(0)")
        so = (idx % 2) * 16384
        for h in range(2):
            vb = "v13" if h == 0 else "v14"
            for t in range(4):
                a(f"ds_read_b128 v[{64+32*h+4*t}:{67+32*h+4*t}], {vb} offset:{so + t*2048}")
                a(f"ds_read_b128 v[{80+32*h+4*t}:{83+32*h+4*t}], {vb} offset:{so + 8192 + t*2048}")
        ab = 0 if units[idx][0] == 'd' else 64
        for h in range(2):
            a(f"s_waitcnt lgkmcnt({8*(1-h)})")
            for m in range(4):
                for n in range(4):
                    c = ab + 4*(4*m+n)
                    tr = 64 + 32*h + 4*m
                    wr = 80 + 32*h + 4*n
                    a(f"v_mfma_f32_16x16x32_bf16 a[{c}:{c+3}], v[{wr}:{wr+3}], v[{tr}:{tr+3}], a[{c}:{c+3}]")
    a("s_barrier")
    a("s_nop 7")
    a("s_nop 7")
    a("""
    s_lshl_b32 s65, s58, 15
    v_lshlrev_b32 v9, 4, v1
    v_add_u32 v9, s65, v9
    """)
    for t in range(32):
        for r in range(4):
            a(f"v_accvgpr_read_b32 v{64+r}, a{4*t+r}")
        a(f"ds_write_b128 v9, v[64:67] offset:{t*1024}")
        a("s_nop 1")
    a("s_waitcnt lgkmcnt(0)")
    a("s_barrier")
    a("""
    s_lshl_b32 s65, s58, 12           ; m*4 tiles*1024
    v_lshlrev_b32 v9, 4, v1
    v_add_u32 v9, s65, v9
    s_lshl_b32 s65, s56, 6
    s_lshl_b32 s66, s58, 4
    s_add_u32 s65, s65, s66
    v_add_u32 v10, s65, v3            ; token
    s_lshl_b32 s66, s57, 6
    v_lshl_add_u32 v11, v4, 2, s66
    v_lshlrev_b32 v12, 10, v10
    v_lshl_add_u32 v12, v11, 1, v12
    v_lshlrev_b32 v13, 1, v11
    v_lshlrev_b32 v14, 11, v10
    v_lshl_add_u32 v14, v11, 2, v14
    v_add_u32 v15, 0x10000, v9
    """)
    for n in range(4):
        a(f"buffer_load_dwordx2 v[{16+2*n}:{17+2*n}], v12, s[40:43], 0 offen offset:{n*32}")
        a(f"buffer_load_dwordx2 v[{24+2*n}:{25+2*n}], v12, s[44:47], 0 offen offset:{n*32}")
        a(f"buffer_load_dwordx2 v[{32+2*n}:{33+2*n}], v13, s[48:51], 0 offen offset:{n*32}")
    for n in range(4):
        for which in range(2):
            dst = 64 + 4*which
            for sw in range(4):
                r0 = 72 + 4*sw
                a(f"ds_read_b128 v[{r0}:{r0+3}], {'v9' if sw < 2 else 'v15'} offset:{(sw%2)*32768 + which*16384 + n*1024}")
            a("s_waitcnt lgkmcnt(0)")
            for r in range(4):
                a(f"v_add_f32 v{dst+r}, v{72+r}, v{76+r}")
                a(f"v_add_f32 v{88+r}, v{80+r}, v{84+r}")
                a(f"v_add_f32 v{dst+r}, v{dst+r}, v{88+r}")
        if n == 0:
            a("s_waitcnt vmcnt(0)")
        for r in range(4):
            d, y = 64+r, 68+r
            def unpack(dst, base):
                src = base + (r >> 1)
                if r & 1: a(f"v_and_b32 v{dst}, 0xffff0000, v{src}")
                else: a(f"v_lshlrev_b32 v{dst}, 16, v{src}")
            unpack(92, 16+2*n); unpack(93, 24+2*n); unpack(94, 32+2*n)
            rne_bf16(a, d, d)
            a(f"v_mul_f32 v95, 0xbfb8aa3b, v{d}")
            a("v_exp_f32 v95, v95")
            a("s_nop 0")
            a("v_add_f32 v95, 1.0, v95")
            a("v_rcp_f32 v95, v95")
            a("s_nop 0")
            a(f"v_mul_f32 v95, v{d}, v95")
            rne_bf16(a, 95, 95)
            a("v_mul_f32 v93, v93, v94")
            rne_bf16(a, 93, 93)
            a(f"v_fma_f32 v93, 2.0, v{y}, v93")
            a(f"v_fma_f32 v{40+r}, v93, v95, v92")
        a(f"buffer_store_dwordx4 v[40:43], v14, s[52:55], 0 offen offset:{n*64}")
        a("s_nop 1")
    a("s_endpgm")
    a("K3_EXIT:")
    a("s_endpgm")
    return kernel_desc("k3_kernel", 256, 72, 128)
```
